```python
import torch

def _softmax(x, axis=-1):
    return torch.softmax(x, dim=axis)
def _gelu(x):
    return torch.nn.functional.gelu(x, approximate="tanh")
def _silu(x):
    return torch.nn.functional.silu(x)
def _sigmoid(x):
    return torch.sigmoid(x)
def _layernorm(x, axis=-1, eps=1e-5):
    m = x.mean(dim=axis, keepdim=True)
    v = x.var(dim=axis, keepdim=True, unbiased=False)
    return (x - m) / torch.sqrt(v + eps)
def _scatter_add(tgt, idx, src, axis=0):
    return tgt.clone().index_add_(axis, idx, src)
def _segment_sum(src, seg, n):
    out = torch.zeros((n,) + src.shape[1:], dtype=src.dtype)
    return out.index_add_(0, seg, src)
def _pad(x, pw):
    flat = tuple(v for pair in reversed(pw) for v in pair)
    return torch.nn.functional.pad(x, flat)

kernel_name = 'gated_mix__sliding_block__mixer_channel_mlp__prompt'

def setup_inputs():

    _w = (lambda a: (lambda t: t.to(torch.bfloat16) if t.is_floating_point() else t)(torch.as_tensor(a)))
    def _A_setup():
        B, S, D = 1, 2048, 512
        return {
            "x": _w((lambda *s: torch.randn(*s, dtype=torch.bfloat16) * 0.05)(B, S, D)),
            "wqkv": _w((lambda *s: torch.randn(*s, dtype=torch.bfloat16) * 0.8)(D, 3 * D)),
            "wo": _w((lambda *s: torch.randn(*s, dtype=torch.bfloat16) * 0.05)(D, D)),
        }
    _A_in = _A_setup()

    def _B_setup():
        B, S, D, F = 1, 2048, 512, 1376
        return {
            "x": _w((lambda *s: torch.randn(*s, dtype=torch.bfloat16) * 0.05)(B, S, D)),
            "w1": _w((lambda *s: torch.randn(*s, dtype=torch.bfloat16) * 3.2)(D, F) * (D ** -0.5)),
            "b1": _w((lambda *s: torch.randn(*s, dtype=torch.bfloat16) * 1.6)(F)),
            "w2": _w((lambda *s: torch.randn(*s, dtype=torch.bfloat16) * 0.2)(F, D) * (F ** -0.5)),
            "b2": _w((lambda *s: torch.randn(*s, dtype=torch.bfloat16) * 0.2)(D)),
        }
    _B_in = _B_setup()

    return {
        "A_x": _A_in["x"],
        "A_wqkv": _A_in["wqkv"],
        "A_wo": _A_in["wo"],
        "B_x": _B_in["x"],
        "B_w1": _B_in["w1"],
        "B_b1": _B_in["b1"],
        "B_w2": _B_in["w2"],
        "B_b2": _B_in["b2"],
        "gate_w": _w((lambda *s: torch.randn(*s, dtype=torch.bfloat16) * 0.05)(512) * 16.0),
    }

def reference(A_x, A_wqkv, A_wo, B_x, B_w1, B_b1, B_w2, B_b2, gate_w):
    def _A_ref(x, wqkv, wo):
        B, S, D = x.shape
        H = 32; Dh = D // H; W = 256
        qkv = (lambda x, *d: x.permute(*d))((x @ wqkv).reshape(B, S, 3, H, Dh), 2, 0, 3, 1, 4)
        q, k, v = qkv[0], qkv[1], qkv[2]
        scores = torch.einsum("bhqd,bhkd->bhqk", q, k) * (Dh ** -0.5)
        idx = torch.arange(S)
        mask = (idx[:, None] - idx[None, :] >= 0) & (idx[:, None] - idx[None, :] < W)
        scores = torch.where(mask[None, None], scores, -1e9)
        p = _softmax(scores, axis=-1)
        o = torch.einsum("bhqk,bhkd->bhqd", p, v)
        return (lambda x, *d: x.permute(*d))(o, 0, 2, 1, 3).reshape(B, S, D) @ wo

    def _B_ref(x, w1, b1, w2, b2):
        y = _layernorm(x, axis=-1)
        h = _gelu(torch.einsum("bsd,df->bsf", y, w1) + b1)
        return torch.einsum("bsf,fd->bsd", h, w2) + b2

    x = A_x
    g = _sigmoid((x * gate_w).sum(-1, keepdims=True))
    a = _A_ref(x, A_wqkv, A_wo)
    b = _B_ref(x, B_w1, B_b1, B_w2, B_b2)
    return g * a + (1 - g) * b
```

```python
import re

REG_RE = re.compile(r'(?<![\w.])([vas])(?:(\d+)|\[(\d+):(\d+)\])(?![\w])')

def regs_of(tok):
    out = set()
    for m in REG_RE.finditer(tok):
        k = m.group(1)
        if m.group(2) is not None:
            out.add((k, int(m.group(2))))
        else:
            for i in range(int(m.group(3)), int(m.group(4)) + 1):
                out.add((k, i))
    if re.search(r'\bvcc\b', tok): out.add(('s', 'vcc'))
    if re.search(r'\bexec\b', tok): out.add(('s', 'exec'))
    if re.search(r'\bm0\b', tok): out.add(('s', 'm0'))
    return out

def split_ops(s):
    ops, depth, cur = [], 0, ""
    for ch in s:
        if ch == '[' or ch == '(': depth += 1
        if ch == ']' or ch == ')': depth -= 1
        if ch == ',' and depth == 0:
            ops.append(cur.strip()); cur = ""
        else:
            cur += ch
    if cur.strip(): ops.append(cur.strip())
    return ops

TRANS = ("v_exp_f32", "v_log_f32", "v_rcp_f32", "v_rsq_f32", "v_sqrt_f32", "v_sin_f32", "v_cos_f32")

class I:
    __slots__ = ("text", "mn", "ops", "kind", "defs", "uses", "tag", "opt", "cdef", "srcc", "wide", "arg")
    def __init__(self, text, tag=None, opt=False):
        self.text = text.strip(); self.tag = tag; self.opt = opt
        self.defs = set(); self.uses = set(); self.srcc = set(); self.wide = False; self.arg = None
        t = self.text.split(';')[0].strip()
        if t.endswith(':'):
            self.kind = 'label'; self.mn = t; self.ops = []; return
        if t.startswith('@'):
            p = t.split(None, 1); self.kind = 'pseudo'; self.mn = p[0]; self.arg = p[1] if len(p) > 1 else None; self.ops = []; return
        p = t.split(None, 1)
        self.mn = mn = p[0]; ops = split_ops(p[1]) if len(p) > 1 else []
        self.ops = ops
        R = [regs_of(o) for o in ops]
        allr = set().union(*R) if R else set()
        if mn.startswith('v_mfma'):
            self.kind = 'mfma'; self.defs = R[0]; self.uses = R[1] | R[2] | R[3]; self.srcc = R[3]
        elif mn.startswith('v_'):
            self.kind = 'valu'
            if mn.startswith('v_cmp'):
                self.defs = R[0]; self.uses = set().union(*R[1:])
                if mn.startswith('v_cmpx'): self.defs = self.defs | {('s', 'exec')}
            elif mn.startswith('v_permlane') and 'swap' in mn:
                self.defs = R[0] | R[1]; self.uses = R[0] | R[1]
            elif mn.startswith(('v_add_co', 'v_sub_co', 'v_addc_co', 'v_subb_co')):
                self.defs = R[0] | R[1]; self.uses = set().union(*R[2:])
            elif mn.startswith(('v_fmac', 'v_dot2c', 'v_pk_fmac')):
                self.defs = R[0]; self.uses = allr
            elif mn == 'v_nop':
                pass
            else:
                self.defs = R[0]; self.uses = set().union(*R[1:]) if len(R) > 1 else set()
                if mn.startswith('v_cndmask') and len(ops) == 3: self.uses.add(('s', 'vcc'))
                if 'dpp' in mn or 'row_' in t or 'quad_perm' in t: self.uses |= R[0]
        elif mn.startswith('ds_'):
            self.kind = 'ds'
            if mn.startswith(('ds_read', 'ds_bpermute', 'ds_permute', 'ds_swizzle')) or '_rtn' in mn:
                self.defs = R[0]; self.uses = set().union(*R[1:])
            else:
                self.uses = allr
        elif mn.startswith(('buffer_', 'global_')):
            self.kind = 'vmem'
            lds = bool(re.search(r'\blds\b', t)) or '_lds_' in mn
            if 'load' in mn and not lds:
                self.defs = R[0]; self.uses = set().union(*R[1:])
            else:
                self.uses = set(allr)
                if lds: self.uses.add(('s', 'm0'))
                if 'store' in mn and ('x3' in mn or 'x4' in mn): self.wide = True
        elif mn.startswith(('s_load', 's_buffer_load', 's_memtime', 's_memrealtime')):
            self.kind = 'smem'; self.defs = R[0]; self.uses = set().union(*R[1:]) if len(R) > 1 else set()
        elif mn.startswith(('s_branch', 's_cbranch', 's_endpgm', 's_setpc', 's_swappc')):
            self.kind = 'branch'
        elif mn in ('s_waitcnt', 's_nop', 's_barrier', 's_sleep', 's_setprio'):
            self.kind = 'ctl'
        elif mn.startswith('s_'):
            self.kind = 'salu'
            if mn.startswith(('s_cmp', 's_bitcmp')):
                self.uses = allr
            else:
                self.defs = R[0]; self.uses = set().union(*R[1:]) if len(R) > 1 else set()
                if 'saveexec' in mn: self.defs = self.defs | {('s', 'exec')}
        else:
            raise ValueError("unknown instruction: " + text)
    def is_trans(self):
        return self.kind == 'valu' and self.mn.startswith(TRANS)
    def passes(self):
        if '32x32x16' in self.mn: return 8
        if '16x16x32' in self.mn: return 4
        if '4x4x4' in self.mn: return 2
        raise ValueError(self.mn)
    def cost(self):
        if self.kind == 'mfma': return 8
        if self.kind in ('label', 'pseudo'): return 0
        if self.is_trans(): return 8
        if self.kind == 'vmem': return 12
        return 4

def L(text, tag=None, opt=False):
    out = []
    for ln in text.split('\n'):
        ln = ln.strip()
        if not ln or ln.startswith(';'): continue
        out.append(I(ln, tag=tag, opt=opt))
    return out

def vr(b, n=1, k='v'):
    return f"{k}{b}" if n == 1 else f"{k}[{b}:{b+n-1}]"
def ar(b, n=1): return vr(b, n, 'a')
def sr(b, n=1): return vr(b, n, 's')

def place_waits(prog):
    out = []
    vm, lg = [], []
    smem = set()
    def emit(vn=None, ln=None):
        parts = []
        if vn is not None: parts.append(f"vmcnt({min(vn, 63)})")
        if ln is not None: parts.append(f"lgkmcnt({min(ln, 15)})")
        out.append(I("s_waitcnt " + " ".join(parts)))
    def younger(q, idx):
        return sum(1 for e in q[idx+1:] if not e['opt'])
    for ins in prog:
        if ins.kind == 'pseudo':
            if ins.mn in ('@waitvm', '@waitds'):
                q = vm if ins.mn == '@waitvm' else lg
                tags = ins.arg.split()
                idx = max((i for i, e in enumerate(q) if e['tag'] in tags), default=None)
                if idx is not None:
                    n = younger(q, idx)
                    if ins.mn == '@waitvm': emit(vn=n)
                    else: emit(ln=0 if smem else n); smem.clear() if smem else None
                    del q[:idx+1]
                continue
            if ins.mn == '@flush':
                vm.clear(); lg.clear(); smem.clear(); continue
            out.append(ins); continue
        if ins.kind == 'ctl' and ins.mn == 's_waitcnt':
            m = re.search(r'vmcnt\((\d+)\)', ins.text)
            if m:
                n = int(m.group(1))
                if n == 0: vm.clear()
                else:
                    keep = 0; i = len(vm)
                    while i > 0 and keep < n:
                        i -= 1
                        if not vm[i]['opt']: keep += 1
                    del vm[:i]
            m = re.search(r'lgkmcnt\((\d+)\)', ins.text)
            if m:
                n = int(m.group(1))
                if n == 0: lg.clear(); smem.clear()
                elif not smem: del lg[:max(0, len(lg) - n)]
            out.append(ins); continue
        touch = ins.defs | ins.uses
        vn = ln = None
        if touch:
            idx = max((i for i, e in enumerate(vm) if e['defs'] & touch), default=None)
            if idx is not None:
                vn = younger(vm, idx); del vm[:idx+1]
            idx = max((i for i, e in enumerate(lg) if e['defs'] & touch), default=None)
            if idx is not None:
                ln = younger(lg, idx); del lg[:idx+1]
                if smem: ln = 0; smem.clear(); lg.clear()
            if smem & touch:
                ln = 0; smem.clear(); lg.clear()
        if vn is not None or ln is not None: emit(vn, ln)
        out.append(ins)
        if ins.kind == 'vmem': vm.append(dict(defs=set(ins.defs), tag=ins.tag, opt=ins.opt))
        elif ins.kind == 'ds': lg.append(dict(defs=set(ins.defs), tag=ins.tag, opt=ins.opt))
        elif ins.kind == 'smem': smem |= ins.defs
    return out

def states(ins):
    if ins.kind in ('label', 'pseudo'): return 0
    if ins.mn == 's_nop': return int(ins.ops[0], 0) + 1
    return 1

XW = {2: 5, 4: 8, 8: 12, 16: 20}
XC = {2: 4, 4: 6, 8: 10, 16: 18}
XWAR = {2: 1, 4: 3, 8: 7, 16: 15}

def need(p, c):
    n = 0
    vregs = lambda s: {r for r in s if r[0] in 'va'}
    sregs = lambda s: {r for r in s if r[0] == 's'}
    if p.kind == 'mfma':
        ps = p.passes()
        if c.kind == 'mfma':
            ab = c.uses - c.srcc if c.srcc else c.uses
            a_b = regs_of(c.ops[1]) | regs_of(c.ops[2])
            if p.defs & a_b: n = max(n, XW[ps])
            if p.defs & c.srcc:
                if not (p.defs == c.srcc and c.passes() == ps): n = max(n, XC[ps])
                elif ps == 2: n = max(n, 2)
            if p.defs & c.defs and not (p.defs & c.srcc): n = max(n, XC[ps])
        elif c.kind in ('valu', 'vmem', 'ds'):
            if p.defs & (c.uses | c.defs): n = max(n, XW[ps])
            if c.kind == 'valu' and p.srcc & c.defs: n = max(n, XWAR[ps])
            if c.kind != 'valu' and p.srcc & c.defs: n = max(n, XWAR[ps])
    elif p.kind == 'valu':
        pv, psg = vregs(p.defs), sregs(p.defs)
        isdot = p.mn.startswith('v_dot')
        if c.kind == 'mfma' and pv & c.uses: n = max(n, 3 if isdot else 2)
        if c.kind == 'mfma' and ('s', 'exec') in psg: n = max(n, 4)
        if c.kind == 'valu':
            if p.is_trans() and pv & c.uses and not c.is_trans(): n = max(n, 1)
            if p.is_trans() and pv & c.uses: n = max(n, 1)
            if c.mn.startswith('v_permlane') and pv & c.uses: n = max(n, 2)
            if c.mn.startswith(('v_readfirstlane', 'v_readlane')) and pv & c.uses: n = max(n, 1)
            if ('dpp' in c.mn or 'row_' in c.text or 'quad_perm' in c.text) and pv & c.uses: n = max(n, 2)
            if psg & c.uses: n = max(n, 2)
            if c.mn.startswith(('v_readlane', 'v_writelane')) and psg & c.uses: n = max(n, 4)
            if isdot and pv & (c.uses | c.defs):
                if not (c.mn == p.mn and pv & c.defs and not (pv & (regs_of(c.ops[1]) | regs_of(c.ops[2])))): n = max(n, 3)
            if 'sdwa' in p.mn and pv & (c.uses | c.defs): n = max(n, 1)
            if ('s', 'exec') in psg: n = max(n, 5)
        if isdot and c.kind in ('vmem', 'ds') and pv & c.uses: n = max(n, 3)
        if p.is_trans() and c.kind in ('vmem', 'ds') and pv & c.uses: n = max(n, 1)
        if c.kind == 'vmem' and psg & c.uses: n = max(n, 5)
        if c.kind == 'salu' and psg & c.uses: n = max(n, 1)
        if c.kind == 'branch' and ('s', 'vcc') in psg and 'vcc' in c.mn: n = max(n, 5)
    elif p.kind == 'salu':
        if ('s', 'm0') in p.defs and c.kind == 'vmem' and ('s', 'm0') in c.uses: n = max(n, 1)
    elif p.kind == 'vmem':
        if p.wide and vregs(regs_of(p.ops[0])) & c.defs: n = max(n, 2)
    elif p.kind == 'ds':
        if p.mn.startswith('ds_write_b128') and c.kind == 'valu' and vregs(regs_of(p.ops[1])) & c.defs: n = max(n, 2)
    return n

def pad_hazards(prog):
    out = []
    for ins in prog:
        if ins.kind in ('label', 'pseudo'):
            out.append(ins); continue
        dist = 0; req = 0
        for p in reversed(out):
            if dist >= 20: break
            if p.kind not in ('label', 'pseudo', 'ctl', 'branch'):
                r = need(p, ins) - dist
                if r > req: req = r
            dist += states(p)
        while req > 0:
            k = min(req, 16)
            out.append(I(f"s_nop {k-1}")); req -= k
        out.append(ins)
    return out

def render(prog):
    lines = []
    for i in prog:
        if i.kind == 'pseudo':
            if i.mn == '@c': lines.append("    ; " + (i.arg or ""))
            elif i.mn == '@raw': lines.append(i.arg)
            continue
        lines.append(i.text if i.kind == 'label' else "    " + i.text)
    return "\n".join(lines) + "\n"

def finalize(prog):
    return pad_hazards(place_waits(prog))

def weave(main, fill, budget=24):
    out = []; fi = 0
    i = 0; n = len(main)
    while i < n:
        ins = main[i]; out.append(ins); i += 1
        if ins.kind == 'mfma':
            j = i; own = 0
            while j < n and main[j].kind != 'mfma':
                own += main[j].cost(); j += 1
            room = budget - own
            while fi < len(fill) and fill[fi].cost() <= room:
                room -= fill[fi].cost(); out.append(fill[fi]); fi += 1
    return out, fill[fi:]
```

```python
import sys, struct
from core import *

KNAME = "gated_mix__sliding_block__mixer_channel_mlp__prompt_kernel"
def f2u(x): return struct.unpack('<I', struct.pack('<f', x))[0]
def hx(x): return "0x%08x" % (x & 0xffffffff)

WS_FLAGS = 4096
WS_KV = 1 << 20
WS_ACT = 8 << 20
ACT_O = 352 * 1024
WS_STAMP = 32 << 20
ZONE = 40960
Z_X = 0; Z_WKV = 16384; Z_M01 = 32768; Z_GW = 38912
MISC = 159 * 1024
L_CS = MISC; L_B1 = MISC + 384
L_G = 158 * 1024 + 512
KVP = 1040
RING0 = 50176; RINGSZ = 26 * 1024; NRING = 13
assert 3 * ZONE + 39936 == MISC
L_G = 2 * ZONE + 39936
L_G2 = RING0 + 4 * RINGSZ
assert L_G2 + 512 <= 3 * ZONE + Z_GW

def m_piece(c, t):
    if c < 2: return Z_M01 + (c * 3 + t) * 1024
    if c < 6: return Z_X + (c - 2) * 4096 + t * 1024
    if c == 6: return Z_X + t * 4096 + 3072
    return Z_WKV + 8192 + t * 1024
def q_piece(c): return Z_WKV + c * 1024

sW, sRB, sJ, sROT = 3, 4, 5, 6
sZONE = 7
SRD_X, SRD_WQKV, SRD_W1, SRD_W2, SRD_WO, SRD_WS, SRD_KV, SRD_H, SRD_O, SRD_OUT, SRD_T = 8, 12, 16, 20, 24, 28, 32, 36, 40, 44, 48
sNON = 52
sT0, sT1, sT2, sT3 = 54, 55, 56, 57
sXB = 58; sKVCOL = 59; sMCOL = 60; sQCOL = 61; sW16 = 62; sSPIN = 63
sPTR = 64
sEX = 96
sU0, sU1 = 98, 99
sST = 100
def srd(b): return sr(b, 4)

vLANE = 0
vXQ = 1; vXR = 5; vWD = 9; vMD = 11; vQD = 12
vWR = 13
vPR = 19
vOWN = 22; vGWR = 23; vL16 = 24
vSUM, vSQ, vGD = 25, 26, 27
vCS = 28
vC2 = 31
ACC = 32
TMP = 96
XF = 128
vRSTD, vNRM, vCSR = 25, 26, 27

def lds_ref(baseregs, addr):
    b = addr >> 16
    return f"v{baseregs + b}", addr & 0xffff

class Gen:
    def __init__(self, stamps=False, stop_after=None):
        self.p = []
        self.stamps = stamps
        self.nst = 0
        self.stop_after = stop_after
        self.nl = 0
        self.tail = []
    def e(self, text, tag=None, opt=False):
        self.p += L(text, tag, opt)
    def add(self, lst): self.p += lst
    def label(self, n):
        self.nl += 1; return f"L{n}_{self.nl}"
    def stamp(self):
        if not self.stamps: return
        k = self.nst; self.nst += 1
        self.e(f"s_memtime s[{sST}:{sST+1}]\ns_waitcnt lgkmcnt(0)\nv_mov_b32 v{TMP+31}, s{sST}\nv_accvgpr_write_b32 a{240+k}, v{TMP+31}")

    def mk_srd(self, b, ptr, size, off=None):
        if off is None:
            self.e(f"s_mov_b32 s{b}, s{ptr}\ns_mov_b32 s{b+1}, s{ptr+1}")
        else:
            self.e(f"s_add_u32 s{b}, s{ptr}, {off}\ns_addc_u32 s{b+1}, s{ptr+1}, 0")
        self.e(f"s_mov_b32 s{b+2}, {hx(size)}\ns_mov_b32 s{b+3}, 0x20000")

    def prologue(self):
        e = self.e
        e(f"""
        s_cmp_ge_u32 s2, 256
        s_cbranch_scc1 L_end
        s_load_dwordx16 s[64:79], s[0:1], 0
        s_load_dwordx8 s[80:87], s[0:1], 64
        v_lshrrev_b32 v1, 6, v0
        v_and_b32 v0, 63, v0
        v_readfirstlane_b32 s{sW}, v1
        s_and_b32 s{sT0}, s2, 7
        s_lshr_b32 s{sT1}, s2, 3
        s_lshr_b32 s{sRB}, s{sT0}, 1
        s_lshl_b32 s{sRB}, s{sRB}, 2
        s_and_b32 s{sT2}, s{sT1}, 3
        s_add_u32 s{sRB}, s{sRB}, s{sT2}
        s_and_b32 s{sJ}, s{sT0}, 1
        s_lshl_b32 s{sJ}, s{sJ}, 3
        s_lshr_b32 s{sT1}, s{sT1}, 2
        s_add_u32 s{sJ}, s{sJ}, s{sT1}
        s_lshl_b32 s{sT2}, s{sT2}, 1
        s_add_u32 s{sROT}, s{sJ}, s{sT2}
        s_and_b32 s{sROT}, s{sROT}, 7
        s_mul_i32 s{sZONE}, s{sW}, {ZONE}
        s_lshl_b32 s{sXB}, s{sRB}, 2
        s_add_u32 s{sXB}, s{sXB}, s{sW}
        s_lshl_b32 s{sXB}, s{sXB}, 15
        s_lshl_b32 s{sKVCOL}, s{sJ}, 7
        s_add_u32 s{sKVCOL}, s{sKVCOL}, 1024
        s_mul_i32 s{sMCOL}, s{sJ}, 192
        s_lshl_b32 s{sQCOL}, s{sJ}, 6
        s_lshl_b32 s{sW16}, s{sW}, 4
        """)
        t0, t1, t2, t3 = TMP, TMP+1, TMP+2, TMP+3
        e(f"""
        v_lshrrev_b32 v{t0}, 3, v0
        v_and_b32 v{t1}, 7, v0
        v_lshrrev_b32 v{t2}, 4, v0
        v_xor_b32 v{t3}, v{t1}, v{t2}
        v_lshlrev_b32 v{t3}, 4, v{t3}
        v_lshl_add_u32 v{vXQ}, v{t0}, 10, v{t3}
        v_xor_b32 v{vXQ+1}, 64, v{vXQ}
        v_add_u32 v{vXQ+2}, {2*7168}, v{vXQ}
        v_add_u32 v{vXQ+3}, {3*7168}, v{vXQ+1}
        v_add_u32 v{vXQ+1}, {7168}, v{vXQ+1}
        """)
        e(f"""
        v_and_b32 v{t2}, 1, v{t2}
        v_lshlrev_b32 v{t2}, 2, v{t2}
        v_xor_b32 v{t3}, v{t1}, v{t2}
        v_lshlrev_b32 v{t3}, 4, v{t3}
        v_mul_u32_u24 v{vWD}, 3072, v{t0}
        v_add_u32 v{vWD}, v{vWD}, v{t3}
        v_add_u32 v{vWD+1}, {8*3072-1024}, v{vWD}
        """)
        e("s_waitcnt lgkmcnt(0)")
        self.mk_srd(SRD_X, 64, 2048*1024)
        self.mk_srd(SRD_WQKV, 66, 512*3072)
        self.mk_srd(SRD_WS, 86, 48 << 20)
        self.stamp()
        e(f"""
        v_mov_b32 v{TMP+8}, 0
        s_or_b32 s{sT0}, s2, s{sW}
        s_cmp_lg_u32 s{sT0}, 0
        s_cbranch_scc1 L_nonon0
        """)
        e(f"buffer_load_dwordx2 v[{TMP+10}:{TMP+11}], v{TMP+8}, {srd(SRD_WS)}, 0 offen sc1", opt=True)
        e("L_nonon0:")
        self.add(self.dma_x(0)); self.add(self.dma_wkv(0))
        self.add(self.dma_x(1)); self.add(self.dma_wkv(1))
        self.mk_srd(SRD_W1, 72, 512*2752)
        self.mk_srd(SRD_W2, 76, 1376*1024)
        self.mk_srd(SRD_WO, 68, 512*1024)
        self.mk_srd(SRD_OUT, 82, 2048*1024)
        e(f"s_lshl_b32 s{sT0}, s{sJ}, 18\ns_add_u32 s{sT0}, s{sT0}, {WS_KV}")
        self.mk_srd(SRD_KV, 86, 256*1024, f"s{sT0}")
        e(f"s_lshl_b32 s{sT0}, s{sRB}, 19\ns_add_u32 s{sT0}, s{sT0}, {WS_ACT}")
        self.mk_srd(SRD_H, 86, 86*4096, f"s{sT0}")
        e(f"s_add_u32 s{sT0}, s{sT0}, {ACT_O}")
        self.mk_srd(SRD_O, 86, 32*4096, f"s{sT0}")
        self.mk_srd(SRD_T, 80, 1024)
        e(f"""
        v_add_u32 v{t2}, s{sROT}, v{t0}
        v_and_b32 v{t2}, 7, v{t2}
        v_lshl_add_u32 v{t2}, v{t2}, 3, v{t1}
        v_lshlrev_b32 v{t2}, 4, v{t2}
        s_add_u32 s{sT0}, s{sZONE}, {Z_GW}
        s_mov_b32 m0, s{sT0}
        """)
        e(f"buffer_load_dwordx4 v{t2}, {srd(SRD_T)}, 0 offen lds", tag="gw")
        self.add(self.dma_x(2)); self.add(self.dma_wkv(2))
        self.mk_srd(SRD_T, 74, 1376*2)
        e(f"""
        s_and_b32 s{sT0}, s{sW}, 1
        s_lshl_b32 s{sT0}, s{sT0}, 5
        v_add_u32 v80, s{sT0}, v0
        v_lshlrev_b32 v{TMP+5}, 1, v80
        """)
        e(f"buffer_load_ushort v81, v{TMP+5}, {srd(SRD_T)}, s{sMCOL} offen")
        self.add(self.dma_x(3)); self.add(self.dma_wkv(3))
        e(f"""
        v_and_b32 v{t0}, 31, v0
        v_lshrrev_b32 v{t1}, 5, v0
        v_bfe_u32 v{t2}, v0, 1, 3
        v_xor_b32 v{t2}, v{t1}, v{t2}
        v_lshlrev_b32 v{t2}, 4, v{t2}
        v_lshl_add_u32 v{t2}, v{t0}, 7, v{t2}
        v_add_u32 v{vXR}, s{sZONE}, v{t2}
        v_xor_b32 v{vXR+1}, 32, v{vXR}
        v_xor_b32 v{vXR+2}, 64, v{vXR}
        v_xor_b32 v{vXR+3}, 96, v{vXR}
        """)
        e(f"""
        v_lshlrev_b32 v{t2}, 4, v{t1}
        v_add_u32 v{vGWR}, s{sZONE}, v{t2}
        v_lshlrev_b32 v{vL16}, 4, v0
        """)
        e(f"""
        v_bfe_u32 v{t0}, v0, 2, 2
        v_lshl_add_u32 v{t0}, v{t1}, 3, v{t0}
        v_bfe_u32 v{t2}, v0, 4, 1
        v_lshlrev_b32 v{t2}, 1, v{t2}
        v_bfe_u32 v{t3}, v0, 1, 1
        v_add_u32 v{t2}, v{t2}, v{t3}
        v_bfe_u32 v{t3}, v0, 3, 1
        v_lshlrev_b32 v{t3}, 2, v{t3}
        v_xor_b32 v{t3}, v{t2}, v{t3}
        v_lshlrev_b32 v{t3}, 4, v{t3}
        v_lshl_add_u32 v{t3}, v{t0}, 7, v{t3}
        v_and_b32 v{vWR}, 1, v0
        v_lshl_add_u32 v{vWR}, v{vWR}, 3, v{t3}
        v_xor_b32 v{vWR+3}, 64, v{vWR}
        v_add_u32 v{vWR+1}, 0x10000, v{vWR}
        v_add_u32 v{vWR+2}, 0x20000, v{vWR}
        v_add_u32 v{vWR+4}, 0x10000, v{vWR+3}
        v_add_u32 v{vWR+5}, 0x20000, v{vWR+3}
        """)
        e(f"""
        v_bfe_u32 v{t2}, v0, 4, 1
        v_lshlrev_b32 v{t2}, 5, v{t2}
        v_lshl_add_u32 v{t2}, v{t0}, 6, v{t2}
        v_and_b32 v{t3}, 3, v0
        v_lshl_add_u32 v{vPR}, v{t3}, 3, v{t2}
        v_add_u32 v{vPR+1}, 0x10000, v{vPR}
        v_add_u32 v{vPR+2}, 0x20000, v{vPR}
        v_add_u32 v{vOWN}, s{sZONE}, v{vPR}
        """)
        e(f"""
        v_lshrrev_b32 v{t0}, 2, v0
        v_lshlrev_b32 v{t3}, 4, v{t3}
        v_mul_u32_u24 v{vMD}, 2752, v{t0}
        v_add_u32 v{vMD}, v{vMD}, v{t3}
        v_mul_u32_u24 v{vQD}, 3072, v{t0}
        v_add_u32 v{vQD}, v{vQD}, v{t3}
        v_mov_b32 v{vSUM}, 0
        v_mov_b32 v{vSQ}, 0
        v_mov_b32 v{vGD}, 0
        v_mov_b32 v{vCS}, 0
        v_mov_b32 v{vCS+1}, 0
        v_mov_b32 v{vCS+2}, 0
        v_mov_b32 v{vC2}, {hx(f2u(-2.302208198 * 0.044715))}
        """)
        e(f"""
        v_lshlrev_b32 v80, 2, v80
        v_add_u32 v80, {L_CS}, v80
        ds_write_b32 v80, v{vSUM}
        """)
        self.mk_srd(SRD_T, 84, 256)
        e(f"""
        s_or_b32 s{sT0}, s2, s{sW}
        s_cmp_lg_u32 s{sT0}, 0
        s_cbranch_scc1 L_nonon1
        v_add_co_u32 v{TMP+10}, vcc, 0x7f4a7c16, v{TMP+10}
        v_mov_b32 v{TMP+9}, 0x9e3779b9
        v_addc_co_u32 v{TMP+11}, vcc, v{TMP+9}, v{TMP+11}, vcc
        v_or_b32 v{TMP+10}, 1, v{TMP+10}
        s_mov_b64 exec, 1
        """)
        e(f"buffer_store_dwordx2 v[{TMP+10}:{TMP+11}], v{TMP+8}, {srd(SRD_WS)}, 0 offen sc0 sc1", opt=True)
        e(f"buffer_store_dwordx2 v[{TMP+10}:{TMP+11}], v{TMP+8}, {srd(SRD_T)}, 0 offen sc0 sc1", opt=True)
        e("s_mov_b64 exec, -1\nL_nonon1:")

    def kc(self, c):
        return L(f"s_add_u32 s{sT0}, s{sROT}, {c}\ns_and_b32 s{sT0}, s{sT0}, 7")
    def dma_x(self, c):
        o = self.kc(c)
        o += L(f"""
        s_lshl_b32 s{sT1}, s{sT0}, 7
        s_add_u32 s{sT1}, s{sT1}, s{sXB}
        s_add_u32 s{sT2}, s{sZONE}, {Z_X + (c & 3) * 4096}
        s_mov_b32 m0, s{sT2}
        """)
        for q in range(4):
            o += L(f"buffer_load_dwordx4 v{vXQ+q}, {srd(SRD_X)}, s{sT1} offen offset:{q*1024} lds", tag=f"x{c}")
        return o
    def krow(self, c):
        return self.kc(c) + L(f"s_lshl_b32 s{sT1}, s{sT0}, 6\ns_add_u32 s{sT1}, s{sT1}, s{sW16}")
    def dma_wkv(self, c):
        o = self.krow(c)
        o += L(f"""
        s_mul_i32 s{sT1}, s{sT1}, 3072
        s_add_u32 s{sT1}, s{sT1}, s{sKVCOL}
        s_add_u32 s{sT2}, s{sZONE}, {Z_WKV + c * 2048}
        s_mov_b32 m0, s{sT2}
        """)
        for q in range(2):
            o += L(f"buffer_load_dwordx4 v{vWD+q}, {srd(SRD_WQKV)}, s{sT1} offen offset:{q*1024} lds", tag=f"w{c}")
        return o
    def dma_m(self, c):
        o = self.krow(c)
        o += L(f"s_mul_i32 s{sT1}, s{sT1}, 2752\ns_add_u32 s{sT1}, s{sT1}, s{sMCOL}")
        for t in range(3):
            o += L(f"s_add_u32 s{sT2}, s{sZONE}, {m_piece(c, t) - t*64}\ns_mov_b32 m0, s{sT2}")
            o += L(f"buffer_load_dwordx4 v{vMD}, {srd(SRD_W1)}, s{sT1} offen offset:{t*64} lds", tag=f"m{c}")
        return o
    def dma_q(self, c):
        o = self.krow(c)
        o += L(f"""
        s_mul_i32 s{sT1}, s{sT1}, 3072
        s_add_u32 s{sT1}, s{sT1}, s{sQCOL}
        s_add_u32 s{sT2}, s{sZONE}, {q_piece(c)}
        s_mov_b32 m0, s{sT2}
        """)
        o += L(f"buffer_load_dwordx4 v{vQD}, {srd(SRD_WQKV)}, s{sT1} offen lds", tag="q")
        return o

    def kv_reads(self, c):
        o = L(f"@waitvm x{c} w{c}\ns_barrier")
        for s in range(4):
            o += L(f"ds_read_b128 {vr(XF + (4*c+s)*4, 4)}, v{vXR+s} offset:{Z_X + (c&3)*4096}", tag=f"xr{c}")
            for ct in range(2):
                b, off = lds_ref(vWR + 3*ct, s * ZONE + Z_WKV + c * 2048)
                d = (s*2 + ct) * 4
                o += L(f"ds_read_b64_tr_b16 {ar(d, 2)}, {b} offset:{off}\nds_read_b64_tr_b16 {ar(d+2, 2)}, {b} offset:{off+512}")
        return o
    def kv_phase(self, isv):
        o = []
        o += self.kv_reads(0)
        for c in range(8):
            mm = []
            for s in range(4):
                for ct in range(2):
                    acc = vr(ACC + 16*ct, 16); xf = vr(XF + (4*c+s)*4, 4); wf = ar((s*2+ct)*4, 4)
                    cin = "0" if (c == 0 and s == 0) else acc
                    a_, b_ = (xf, wf) if isv else (wf, xf)
                    mm += L(f"v_mfma_f32_32x32x16_bf16 {acc}, {a_}, {b_}, {cin}")
            fill = []
            if c == 0: fill += L("@waitvm gw")
            for s in range(4):
                fill += L(f"ds_read_b128 {vr(TMP + 4*s, 4)}, v{vGWR} offset:{Z_GW + c*128 + s*32}")
            fill += L(f"@waitds xr{c}")
            if c < 4: fill += self.dma_x(c+4) + self.dma_wkv(c+4)
            elif c == 4: fill += self.dma_m(0) + self.dma_m(1)
            elif c == 5: fill += self.dma_m(2) + self.dma_m(3)
            elif c == 6: fill += self.dma_m(4)
            else: fill += self.dma_m(5) + self.dma_m(6)
            m, rest = weave(mm, fill)
            o += m + rest
            if c < 7: o += self.kv_reads(c+1)
            else: o += self.kv_epilogue()
            for r in range(16):
                x = XF + 16*c + r
                o += L(f"v_dot2c_f32_bf16 v{vSUM}, 0x3f803f80, v{x}\nv_dot2c_f32_bf16 v{vSQ}, v{x}, v{x}\nv_dot2c_f32_bf16 v{vGD}, v{TMP+r}, v{x}")
        return o
    def kv_epilogue(self):
        o = L(f"""
        s_and_b32 s{sT0}, s{sJ}, 7
        s_lshl_b32 s{sT0}, s{sT0}, 19
        s_lshr_b32 s{sT1}, s{sXB}, 3
        s_add_u32 s{sT0}, s{sT0}, s{sT1}
        s_lshr_b32 s{sT1}, s{sJ}, 3
        s_lshl_b32 s{sT1}, s{sT1}, 11
        s_add_u32 s{sT0}, s{sT0}, s{sT1}
        s_add_u32 s{sT0}, s{sT0}, {WS_KV}
        s_add_u32 s{sT1}, s{sT0}, {256*1024}
        """)
        P = TMP + 16
        for ct in range(2):
            for r in range(8):
                o += L(f"v_cvt_pk_bf16_f32 v{P + 8*ct + r}, v{ACC+16*ct+2*r}, v{ACC+16*ct+2*r+1}")
            for pc in range(2):
                o += L(f"buffer_store_dwordx4 {vr(P + 8*ct + 4*pc, 4)}, v{vL16}, {srd(SRD_WS)}, s{sT0+ct} offen offset:{pc*1024} sc1", tag="kvst")
        return o

    def flag_store(self, stage):
        return L(f"""
        s_lshl_b32 s{sT0}, s{sRB}, 4
        s_add_u32 s{sT0}, s{sT0}, s{sJ}
        s_lshl_b32 s{sT0}, s{sT0}, 2
        s_add_u32 s{sT0}, s{sT0}, s{sW}
        s_lshl_b32 s{sT0}, s{sT0}, 3
        s_add_u32 s{sT0}, s{sT0}, {WS_FLAGS + stage*8192}
        v_mov_b32 v{TMP+28}, s{sNON}
        v_mov_b32 v{TMP+29}, s{sNON+1}
        v_mov_b32 v{TMP+30}, 0
        s_mov_b64 exec, 1
        buffer_store_dwordx2 v[{TMP+28}:{TMP+29}], v{TMP+30}, {srd(SRD_WS)}, s{sT0} offen sc0 sc1
        s_mov_b64 exec, -1
        """)

    def get_nonce(self):
        lp, dn = self.label("non"), self.label("nond")
        return L(f"""
        s_mov_b32 s{sSPIN}, 0
        v_mov_b32 v{TMP+30}, 0
        {lp}:
        buffer_load_dwordx2 v[{TMP+28}:{TMP+29}], v{TMP+30}, {srd(SRD_T)}, 0 offen sc1
        s_waitcnt vmcnt(0)
        v_readfirstlane_b32 s{sNON}, v{TMP+28}
        v_readfirstlane_b32 s{sNON+1}, v{TMP+29}
        s_add_u32 s{sSPIN}, s{sSPIN}, 1
        s_cmp_lg_u32 s{sNON}, 0
        s_cbranch_scc1 {dn}
        s_sleep 2
        s_cmp_lt_u32 s{sSPIN}, 0x40000
        s_cbranch_scc1 {lp}
        {dn}:
        """)

    def poll(self, vaddr, d):
        lp, dn = self.label("poll"), self.label("polld")
        return L(f"""
        s_mov_b32 s{sSPIN}, 0
        {lp}:
        buffer_load_dwordx2 v[{d}:{d+1}], v{vaddr}, {srd(SRD_WS)}, 0 offen sc1
        s_waitcnt vmcnt(0)
        v_cmp_ne_u64 vcc, s[{sNON}:{sNON+1}], v[{d}:{d+1}]
        s_add_u32 s{sSPIN}, s{sSPIN}, 1
        s_nop 0
        s_cmp_eq_u64 vcc, 0
        s_cbranch_scc1 {dn}
        s_sleep 1
        s_cmp_lt_u32 s{sSPIN}, 0x40000
        s_cbranch_scc1 {lp}
        {dn}:
        """)

    def stats(self):
        t = TMP
        o = []
        for r in (vSUM, vSQ, vGD):
            o += L(f"v_mov_b32 v{t}, v{r}\nv_permlane32_swap_b32 v{t}, v{r}\nv_add_f32 v{r}, v{r}, v{t}")
        rnd = lambda r: f"v_cvt_pk_bf16_f32 v{r}, v{r}, v{r}\nv_lshlrev_b32 v{r}, 16, v{r}"
        o += L(f"""
        v_mul_f32 v{vSUM}, {hx(f2u(1/512))}, v{vSUM}
        v_mul_f32 v{vSQ}, {hx(f2u(1/512))}, v{vSQ}
        v_fma_f32 v{vSQ}, -v{vSUM}, v{vSUM}, v{vSQ}
        v_max_f32 v{vSQ}, 0, v{vSQ}
        {rnd(vSUM)}
        {rnd(vSQ)}
        v_add_f32 v{vSQ}, {hx(f2u(1e-5))}, v{vSQ}
        {rnd(vSQ)}
        v_sqrt_f32 v{vSQ}, v{vSQ}
        {rnd(vSQ)}
        v_rcp_f32 v{t}, v{vSQ}
        {rnd(vGD)}
        v_mul_f32 v{vGD}, {hx(f2u(-1.4426950408889634))}, v{vGD}
        v_exp_f32 v{vGD}, v{vGD}
        v_mul_f32 v{t+1}, v{t}, v{vSUM}
        v_add_f32 v{vGD}, 1.0, v{vGD}
        v_rcp_f32 v{vGD}, v{vGD}
        v_mov_b32 v{vRSTD}, v{t}
        v_sub_f32 v{vNRM}, 0, v{t+1}
        {rnd(vGD)}
        v_accvgpr_write_b32 a239, v{vGD}
        """)
        o += L(f"""
        v_lshrrev_b32 v{vCSR}, 5, v0
        v_lshlrev_b32 v{vCSR}, 4, v{vCSR}
        v_add_u32 v{vCSR}, {L_CS}, v{vCSR}
        v_lshlrev_b32 v81, 16, v81
        ds_write_b32 v80, v81 offset:384
        """)
        return o

    def m_reads(self, n):
        c, s = divmod(n, 4)
        o = []
        if s == 0: o += L(f"@waitvm m{c}\ns_barrier")
        for t in range(3):
            b, off = lds_ref(vPR, s * ZONE + m_piece(c, t))
            d = (n & 1) * 12 + t * 4
            o += L(f"ds_read_b64_tr_b16 {ar(d, 2)}, {b} offset:{off}\nds_read_b64_tr_b16 {ar(d+2, 2)}, {b} offset:{off+256}")
        return o
    def m_phase(self, extra):
        o = self.m_reads(0)
        for c in range(8):
            mm = []
            for s in range(4):
                n = 4*c + s
                rd = self.m_reads(n+1) if n < 31 else []
                k = 0
                for t in range(3):
                    acc = vr(ACC + 16*t, 16)
                    cin = "0" if n == 0 else acc
                    mm += L(f"v_mfma_f32_32x32x16_bf16 {acc}, {ar((n&1)*12 + t*4, 4)}, {vr(XF + n*4, 4)}, {cin}")
                    take = (len(rd) - k) if t == 2 else min(len(rd) - k, 2 + (len(rd) - 6 if t == 0 else 0))
                    mm += rd[k:k+take]; k += take
            fill = []
            for t in range(3):
                fill += L(f"ds_read_b64_tr_b16 {vr(TMP + 4*t, 2)}, v{vOWN} offset:{m_piece(c, t)}\nds_read_b64_tr_b16 {vr(TMP + 4*t + 2, 2)}, v{vOWN} offset:{m_piece(c, t)+256}")
            m, rest = weave(mm, fill)
            o += m + rest
            for r in range(4):
                for t in range(3):
                    o += L(f"v_dot2c_f32_bf16 v{vCS+t}, 0x3f803f80, v{TMP+4*t+r}")
            o += extra.get(c, [])
        o += L(f"""
        v_and_b32 v{TMP}, 31, v0
        v_lshlrev_b32 v{TMP}, 2, v{TMP}
        v_add_u32 v{TMP}, {L_CS}, v{TMP}
        ds_add_f32 v{TMP}, v{vCS}
        ds_add_f32 v{TMP}, v{vCS+1} offset:128
        ds_add_f32 v{TMP}, v{vCS+2} offset:256
        @waitvm q
        s_waitcnt lgkmcnt(0)
        s_barrier
        """)
        return o
    def q_mfmas(self):
        def rd(n):
            c, s = divmod(n, 4)
            b, off = lds_ref(vPR, s * ZONE + q_piece(c))
            d = (n % 4) * 4
            return L(f"ds_read_b64_tr_b16 {ar(d, 2)}, {b} offset:{off}\nds_read_b64_tr_b16 {ar(d+2, 2)}, {b} offset:{off+256}")
        o = rd(0) + rd(1) + rd(2)
        acc = vr(ACC + 48, 16)
        for n in range(32):
            o += L(f"v_mfma_f32_32x32x16_bf16 {acc}, {ar((n%4)*4, 4)}, {vr(XF + n*4, 4)}, {'0' if n == 0 else acc}")
            if n + 3 < 32: o += rd(n+3)
        return o
    def gelu(self):
        C1 = hx(f2u(-2.302208198))
        quads = []
        def rd(k):
            t, i = divmod(k, 4)
            b = TMP + (k & 1) * 8
            return L(f"ds_read_b128 {vr(b, 4)}, v{vCSR} offset:{t*128 + i*32}\nds_read_b128 {vr(b+4, 4)}, v{vCSR} offset:{384 + t*128 + i*32}")
        o = rd(0)
        W = TMP + 16
        P = TMP + 20
        for k in range(12):
            t, i = divmod(k, 4)
            if k + 1 < 12: o += rd(k+1)
            b = TMP + (k & 1) * 8
            A = ACC + 16*t + 4*i
            for r in range(4): o += L(f"v_fma_f32 v{b+r}, v{vNRM}, v{b+r}, v{b+4+r}")
            for r in range(4): o += L(f"v_fma_f32 v{A+r}, v{vRSTD}, v{A+r}, v{b+r}")
            for r in range(4): o += L(f"v_mul_f32 v{W+r}, v{A+r}, v{A+r}")
            for r in range(4): o += L(f"v_fmaak_f32 v{W+r}, v{vC2}, v{W+r}, {C1}")
            for r in range(4): o += L(f"v_mul_f32 v{W+r}, v{A+r}, v{W+r}")
            for r in range(4): o += L(f"v_exp_f32 v{W+r}, v{W+r}")
            for r in range(4): o += L(f"v_add_f32 v{W+r}, 1.0, v{W+r}")
            for r in range(4): o += L(f"v_rcp_f32 v{W+r}, v{W+r}")
            for r in range(4): o += L(f"v_mul_f32 v{A+r}, v{A+r}, v{W+r}")
            pp = P + ((k >> 1) & 1) * 4 + (k & 1) * 2
            o += L(f"v_cvt_pk_bf16_f32 v{pp}, v{A}, v{A+1}\nv_cvt_pk_bf16_f32 v{pp+1}, v{A+2}, v{A+3}")
            if k & 1:
                ks = k >> 1
                o += L(f"s_add_u32 s{sU1}, s{sU0}, {ks*4096}")
                o += L(f"buffer_store_dwordx4 {vr(P + (ks & 1)*4, 4)}, v{vL16}, {srd(SRD_H)}, s{sU1} offen sc1", tag="hst")
        return o

    def kv_fetch(self):
        t = TMP
        o = L(f"""
        v_bfe_u32 v{t}, v0, 1, 2
        v_min_u32 v{t}, 2, v{t}
        s_lshl_b32 s{sT0}, s{sRB}, 2
        s_mul_i32 s{sT1}, s{sW}, 3
        s_add_u32 s{sT0}, s{sT0}, s{sT1}
        s_sub_u32 s{sT3}, s{sT0}, 8
        v_add_u32 v{t}, s{sT3}, v{t}
        v_max_i32 v{t}, 0, v{t}
        v_lshrrev_b32 v{t+1}, 2, v{t}
        v_lshlrev_b32 v{t+1}, 9, v{t+1}
        v_and_b32 v{t}, 3, v{t}
        v_lshl_add_u32 v{t+1}, v{t}, 3, v{t+1}
        v_and_b32 v{t}, 1, v0
        v_lshl_add_u32 v{t+1}, v{t}, 8, v{t+1}
        s_lshr_b32 s{sT1}, s{sJ}, 1
        s_lshl_b32 s{sT1}, s{sT1}, 5
        s_add_u32 s{sT1}, s{sT1}, {WS_FLAGS}
        v_add_u32 v{t+1}, s{sT1}, v{t+1}
        """)
        o += self.poll(t+1, t+2)
        o += L(f"v_and_b32 v{t}, 32, v0\nv_lshlrev_b32 v{t}, 4, v{t}")
        for i in range(3):
            o += L(f"""
            s_add_u32 s{sT0}, s{sT3}, {i}
            s_cmp_lt_i32 s{sT0}, 0
            s_cselect_b64 vcc, -1, 0
            s_cselect_b32 s{sT1}, 0, s{sT0}
            s_cselect_b32 s{sT2}, 64, s{sT0}
            s_lshl_b32 s{sT1}, s{sT1}, 12
            s_lshl_b32 s{sT2}, s{sT2}, 12
            v_cndmask_b32 v{t+4+i}, v{vL16}, v{t}, vcc
            """)
            for pc in range(2):
                o += L(f"buffer_load_dwordx4 {ar(24 + 16*i + 4*pc, 4)}, v{t+4+i}, {srd(SRD_KV)}, s{sT1} offen offset:{pc*1024} sc1")
            for pc in range(2, 4):
                o += L(f"buffer_load_dwordx4 {ar(24 + 16*i + 4*pc, 4)}, v{vL16}, {srd(SRD_KV)}, s{sT2} offen offset:{pc*1024} sc1")
        return o
    def kv_to_lds(self):
        t = TMP + 28
        o = L(f"""
        s_mul_i32 s{sT0}, s{sW}, {3*4*KVP}
        v_add_u32 v{t}, s{sT0}, v{vL16}
        """)
        for i in range(3):
            for pc in range(4):
                o += L(f"ds_write_b128 v{t}, {ar(24 + 16*i + 4*pc, 4)} offset:{(4*i+pc)*KVP}")
        o += L(f"""
        v_lshrrev_b32 v{t+1}, 3, v0
        v_min_u32 v{t+1}, 2, v{t+1}
        v_add_u32 v{t+2}, s{sT3}, v{t+1}
        v_cmp_gt_i32 vcc, 0, v{t+2}
        v_mov_b32 v{t+2}, 0x3f803f80
        v_mul_u32_u24 v{t+1}, {4*KVP}, v{t+1}
        v_cndmask_b32 v{t+2}, v{t+2}, 0, vcc
        v_bfe_u32 v{t+3}, v0, 2, 1
        v_mul_u32_u24 v{t+3}, {KVP}, v{t+3}
        v_add_u32 v{t+1}, v{t+1}, v{t+3}
        v_and_b32 v{t+3}, 3, v0
        v_lshl_add_u32 v{t+1}, v{t+3}, 2, v{t+1}
        v_add_u32 v{t+1}, s{sT0}, v{t+1}
        ds_write_b32 v{t+1}, v{t+2} offset:{2*KVP + 1024}
        """)
        o += L(f"""
        v_and_b32 v{t+1}, 31, v0
        v_lshlrev_b32 v{t+1}, 2, v{t+1}
        s_lshl_b32 s{sT1}, s{sW}, 7
        s_add_u32 s{sT1}, s{sT1}, {L_G2}
        v_add_u32 v{t+1}, s{sT1}, v{t+1}
        v_accvgpr_read_b32 v{t+2}, a239
        ds_write_b32 v{t+1}, v{t+2}
        """)
        return o

    def attention(self, fill):
        QF = 96
        SB = [128, 144, 160, 176]
        CB = [192, 208]; OB = [224, 240]
        PR = [32, 40, 48]; PM = 56
        MX = [64, 65, 66, 67]
        vKA, vVA = 68, 69
        t = 72
        KF = lambda h, k: 0 + (h*9 + k) * 4
        VF = lambda n: 72 + (n % 8) * 4
        order = [8, 0, 7, 6, 5, 4, 3, 2, 1]
        o = []
        o += L(f"""
        s_mul_i32 s{sT0}, s{sW}, {4*KVP}
        v_add_u32 v{vKA}, s{sT0}, v{vL16}
        v_and_b32 v{t}, 16, v0
        v_cmp_eq_u32 vcc, 0, v{t}
        v_mov_b32 v{t}, s{sT0}
        v_add_u32 v{t}, 1024, v{t}
        v_add_u32 v{t+1}, 256, v{vKA}
        v_cndmask_b32 v{vVA}, v{t}, v{vKA}, vcc
        v_cndmask_b32 v{vVA+1}, v{t}, v{t+1}, vcc
        """)
        o += L(f"""
        v_and_b32 v{t}, 31, v0
        v_lshrrev_b32 v{t+1}, 5, v0
        v_lshlrev_b32 v{t+1}, 2, v{t+1}
        v_sub_u32 v{t}, v{t}, v{t+1}
        v_mov_b32 v{t+1}, 0xffff
        v_mov_b32 v{t+2}, 0xffff0000
        """)
        for r in range(16):
            o += L(f"v_cmp_gt_i32 s[{64+2*r}:{65+2*r}], {8*(r//4) + r%4}, v{t}")
        for r in range(8):
            o += L(f"v_cndmask_b32 v{PM+r}, 0, v{t+1}, s[{64+4*r}:{65+4*r}]\nv_cndmask_b32 v{t+3}, 0, v{t+2}, s[{66+4*r}:{67+4*r}]\nv_or_b32 v{PM+r}, v{PM+r}, v{t+3}")
        o += L("s_waitcnt lgkmcnt(0)\ns_barrier")
        for h in range(2):
            for k in order:
                o += L(f"ds_read_b128 {ar(KF(h, k), 4)}, v{vKA} offset:{(4*k + h)*KVP}")
        seq = [(h, k) for h in range(2) for k in order]
        def smf(idx, h, k, c):
            return L(f"v_mfma_f32_32x32x16_bf16 {vr(SB[idx % 4], 16)}, {ar(KF(h, k), 4)}, {vr(QF + 4*h, 4)}, {c}")
        def merge(idx):
            a, b = SB[idx % 4], SB[(idx - 1) % 4]
            return [I(f"v_cndmask_b32 v{a+r}, v{b+r}, v{a+r}, s[{64+2*r}:{65+2*r}]") for r in range(16)]
        def maxes(idx, h, first):
            s = SB[idx % 4]; r = []
            for c in range(2):
                m = MX[2*h + c]; b = s + 8*c
                if first:
                    r.append(I(f"v_max3_f32 v{m}, v{b}, v{b+1}, v{b+2}"))
                    r.append(I(f"v_max3_f32 v{m}, v{m}, v{b+3}, v{b+4}"))
                    r.append(I(f"v_max3_f32 v{m}, v{m}, v{b+5}, v{b+6}"))
                    r.append(I(f"v_max_f32 v{m}, v{m}, v{b+7}"))
                else:
                    for q in range(4): r.append(I(f"v_max3_f32 v{m}, v{m}, v{b+2*q}, v{b+2*q+1}"))
            return [r[i//2 + 4*(i%2)] for i in range(8)]
        def finish_max(h):
            m, m2 = MX[2*h], MX[2*h+1]
            r = L(f"v_max_f32 v{m}, v{m}, v{m2}\nv_mov_b32 v{m2}, v{m}\nv_permlane32_swap_b32 v{m2}, v{m}\nv_max_f32 v{m}, v{m}, v{m2}")
            for q in range(16): r += L(f"v_sub_f32 v{CB[h]+q}, 0, v{m}")
            return r
        def p1_consume(idx):
            h, k = seq[idx]
            if k == 8: return []
            r = []
            if k == 0: r += merge(idx)
            r += maxes(idx, h, k == 0)
            if k == 1: r += finish_max(h)
            return r
        LAG = 2
        for idx in range(18 + LAG):
            if idx < 18: o += smf(idx, *seq[idx], "0")
            if idx - LAG >= 0: o += p1_consume(idx - LAG)
        vcount = [0]
        def vread(h, k):
            r = []
            for f in range(2):
                n = vcount[0]; vcount[0] += 1
                r += L(f"ds_read_b128 {ar(VF(n), 4)}, v{vVA+h} offset:{(4*k + 2 + f)*KVP}")
            return r
        vslot = {}
        n = 0
        for (h, k) in seq:
            vslot[(h, k)] = n; n += 2
        def pv(h, k, P, first):
            r = []
            for f in range(2):
                c = "0" if (first and f == 0) else vr(OB[h], 16)
                r += L(f"v_mfma_f32_32x32x16_bf16 {vr(OB[h], 16)}, {ar(VF(vslot[(h, k)] + f), 4)}, {vr(P + 4*f, 4)}, {c}")
            return r
        pend = []
        pc = [0]
        def epilogue(h):
            O = OB[h]
            r = L(f"v_rcp_f32 v{t}, v{O+8}")
            for q in range(8): r += L(f"v_mul_f32 v{O+q}, v{O+q}, v{t}")
            for q in range(4): r += L(f"v_cvt_pk_bf16_f32 v{t+4+q}, v{O+2*q}, v{O+2*q+1}")
            r += L(f"""
            s_lshl_b32 s{sT0}, s{sJ}, 13
            s_lshl_b32 s{sT1}, s{sW}, 10
            s_add_u32 s{sT0}, s{sT0}, s{sT1}
            s_add_u32 s{sT0}, s{sT0}, {h*4096}
            """)
            r += L(f"buffer_store_dwordx4 {vr(t+4, 4)}, v{vL16}, {srd(SRD_O)}, s{sT0} offen sc1", tag="ost")
            return r
        o += vread(*seq[0]) + vread(*seq[1])
        o += smf(18, *seq[0], vr(CB[0], 16)) + smf(19, *seq[1], vr(CB[0], 16)) + smf(20, *seq[2], vr(CB[0], 16))
        nxt = 3
        nv = 2
        fi = 0
        for idx in range(18):
            h, k = seq[idx]
            if k == 8: continue
            s = SB[(18 + idx) % 4]
            body = []
            if k == 0: body += merge(18 + idx)
            P = PR[pc[0] % 3]; pc[0] += 1
            ex = []
            for q in range(8):
                ex.append(L(f"v_exp_f32 v{s+2*q}, v{s+2*q}\nv_exp_f32 v{s+2*q+1}, v{s+2*q+1}"))
            cv = [L(f"v_cvt_pk_bf16_f32 v{P+q}, v{s+2*q}, v{s+2*q+1}") for q in range(8)]
            side = list(pend); pend = []
            want = idx + 3 if k != 0 else idx + 2
            while nv < 18 and nv <= idx + 2:
                side += vread(*seq[nv]); nv += 1
            later = []
            while nxt < 18 and nxt <= idx + 3:
                later += smf(18 + nxt, *seq[nxt], vr(CB[seq[nxt][0]], 16)); nxt += 1
            for q in range(8):
                body += ex[q]
                if q >= 1: body += cv[q-1]
                if side: body.append(side.pop(0))
                elif fi < len(fill) and q % 2 == 0:
                    body += fill[fi]; fi += 1
            body += cv[7] + side
            body += later
            if k == 0:
                P2 = PR[pc[0] % 3]; pc[0] += 1
                for q in range(8): body += L(f"v_and_b32 v{P2+q}, v{P+q}, v{PM+q}")
                for q in range(8): body += L(f"v_xor_b32 v{P+q}, v{P+q}, v{P2+q}")
                pend = pv(h, 8, P, True) + pv(h, 0, P2, False)
            else:
                pend = pv(h, k, P, False)
            if idx == 12: body += epilogue(0)
            o += body
        o += pend + epilogue(1)
        for f in fill[fi:]: o += f
        return o

    def wf_dma(self, n):
        if n < 22: s, row = SRD_W2, f"s_mul_i32 s{sT1}, s{sW}, {22*16*1024}\ns_add_u32 s{sT1}, s{sT1}, {n*16*1024}"
        else: s, row = SRD_WO, f"s_mul_i32 s{sT1}, s{sW}, {8*16*1024}\ns_add_u32 s{sT1}, s{sT1}, {(n-22)*16*1024}"
        o = L(f"{row}\ns_add_u32 s{sT1}, s{sT1}, s{sU1}\ns_add_u32 s{sT2}, s{sU0}, {(n % NRING)*2048}\ns_mov_b32 m0, s{sT2}")
        for q in range(2):
            o += L(f"buffer_load_dwordx4 v{vWD+q}, {srd(s)}, s{sT1} offen offset:{q*1024} lds", tag=f"wf{n}")
        return o
    def final_setup(self):
        t = TMP + 8
        return L(f"""
        s_mul_i32 s{sU0}, s{sW}, {RINGSZ}
        s_add_u32 s{sU0}, s{sU0}, {RING0}
        s_lshr_b32 s{sU1}, s{sJ}, 1
        s_lshl_b32 s{sU1}, s{sU1}, 7
        v_lshrrev_b32 v{t}, 3, v0
        v_and_b32 v{t+1}, 7, v0
        v_bfe_u32 v{t+2}, v0, 4, 1
        v_lshlrev_b32 v{t+2}, 2, v{t+2}
        v_xor_b32 v{t+1}, v{t+1}, v{t+2}
        v_lshlrev_b32 v{t+1}, 4, v{t+1}
        v_lshl_add_u32 v{vWD}, v{t}, 10, v{t+1}
        v_add_u32 v{vWD+1}, {8*1024-1024}, v{vWD}
        v_lshrrev_b32 v{t}, 5, v0
        v_lshlrev_b32 v{t}, 9, v{t}
        v_sub_u32 v{vWR}, v{vWR}, v{t}
        v_add_u32 v{vWR}, s{sU0}, v{vWR}
        v_xor_b32 v{vWR+1}, 64, v{vWR}
        """)
    def flag_addr(self, stage, d):
        return L(f"""
        v_lshrrev_b32 v{d}, 2, v0
        v_lshlrev_b32 v{d}, 5, v{d}
        v_and_b32 v{d+1}, 1, v0
        v_lshl_add_u32 v{d}, v{d+1}, 3, v{d}
        s_and_b32 s{sT0}, s{sJ}, 1
        s_lshl_b32 s{sT0}, s{sT0}, 4
        s_lshl_b32 s{sT1}, s{sRB}, 9
        s_add_u32 s{sT0}, s{sT0}, s{sT1}
        s_add_u32 s{sT0}, s{sT0}, {WS_FLAGS + stage*8192}
        v_add_u32 v{d}, s{sT0}, v{d}
        """)
    def final(self):
        AB, AA = 128, 192
        HF = 32
        ND = 8
        t = TMP
        o = []
        sA = sXB
        def act_load(n):
            r = HF + (n % ND) * 8
            if n < 22: s, off = SRD_H, n * 4096
            else: s, off = SRD_O, (n - 22) * 4096
            x = L(f"s_add_u32 s{sT3}, s{sA}, {off}")
            for tb in range(2):
                x += L(f"buffer_load_dwordx4 {vr(r + 4*tb, 4)}, v{vL16}, {srd(s)}, s{sT3} offen offset:{tb*1024} sc1")
            return x
        def wread(n):
            x = L(f"@waitvm wf{n}")
            for ct in range(2):
                d = 104 + (n & 1) * 8 + ct * 4
                off = (n % NRING) * 2048
                x += L(f"ds_read_b64_tr_b16 {ar(d, 2)}, v{vWR+ct} offset:{off}\nds_read_b64_tr_b16 {ar(d+2, 2)}, v{vWR+ct} offset:{off+1024}", tag=f"wr{n}")
            return x
        def mf(n):
            x = []
            base = AB if n < 22 else AA
            for tb in range(2):
                for ct in range(2):
                    acc = vr(base + (tb*2 + ct)*16, 16)
                    c = "0" if n in (0, 22) else acc
                    x += L(f"v_mfma_f32_32x32x16_bf16 {acc}, {ar(104 + (n&1)*8 + ct*4, 4)}, {vr(HF + (n%ND)*8 + 4*tb, 4)}, {c}")
            return x
        o += self.flag_addr(1, t) + self.poll(t, t+2)
        o += L(f"""
        s_mul_i32 s{sA}, s{sW}, {22*4096}
        s_and_b32 s{sT0}, s{sJ}, 1
        s_lshl_b32 s{sT0}, s{sT0}, 11
        s_add_u32 s{sA}, s{sA}, s{sT0}
        """)
        for n in range(ND): o += act_load(n)
        o += wread(0)
        for n in range(22):
            fill = []
            if n + 1 < 30: fill += wread(n+1)
            m, rest = weave(mf(n), fill)
            o += m + rest
            if n + ND < 22: o += act_load(n + ND)
            if n + NRING < 30: o += self.wf_dma(n + NRING)
        self_stamp = []
        o += self.flag_addr(2, t) + self.poll(t, t+2)
        o += L(f"""
        s_mul_i32 s{sA}, s{sW}, {8*4096}
        s_and_b32 s{sT0}, s{sJ}, 1
        s_lshl_b32 s{sT0}, s{sT0}, 11
        s_add_u32 s{sA}, s{sA}, s{sT0}
        """)
        for n in range(22, 30): o += act_load(n)
        for n in range(22, 30):
            fill = wread(n+1) if n + 1 < 30 else []
            m, rest = weave(mf(n), fill)
            o += m + rest
        o += L(f"""
        v_and_b32 v{t}, 31, v0
        v_lshlrev_b32 v{t}, 2, v{t}
        s_and_b32 s{sT0}, s{sJ}, 1
        s_lshl_b32 s{sT0}, s{sT0}, 8
        s_add_u32 s{sT0}, s{sT0}, {L_G2}
        v_add_u32 v{t}, s{sT0}, v{t}
        ds_read_b32 v{t+2}, v{t}
        ds_read_b32 v{t+3}, v{t} offset:128
        """)
        for tb in range(2):
            o += L(f"v_sub_f32 v{t+4+tb}, 1.0, v{t+2+tb}\nv_cvt_pk_bf16_f32 v{t+4+tb}, v{t+4+tb}, v{t+4+tb}\nv_lshlrev_b32 v{t+4+tb}, 16, v{t+4+tb}")
        for tb in range(2):
            for r in range(32):
                o += L(f"v_mul_f32 v{AB+tb*32+r}, v{t+4+tb}, v{AB+tb*32+r}")
        for tb in range(2):
            for r in range(32):
                o += L(f"v_fmac_f32 v{AB+tb*32+r}, v{t+2+tb}, v{AA+tb*32+r}")
        RS = 272
        o += L(f"""
        s_barrier
        v_and_b32 v{t}, 31, v0
        v_mul_u32_u24 v{t}, {RS}, v{t}
        v_lshrrev_b32 v{t+1}, 5, v0
        v_lshl_add_u32 v{t}, v{t+1}, 4, v{t}
        s_mul_i32 s{sT0}, s{sW}, {64*RS}
        v_add_u32 v{t}, s{sT0}, v{t}
        """)
        for tb in range(2):
            for ct in range(2):
                for i in range(4):
                    o += L(f"ds_write_b128 v{t}, {vr(AB + (tb*2+ct)*16 + 4*i, 4)} offset:{tb*32*RS + ct*128 + i*32}")
        o += L(f"""
        v_lshrrev_b32 v{t+1}, 3, v0
        v_add_u32 v{t+1}, s{sW16}, v{t+1}
        v_mul_u32_u24 v{t+2}, {RS}, v{t+1}
        v_and_b32 v{t+3}, 7, v0
        v_lshl_add_u32 v{t+2}, v{t+3}, 5, v{t+2}
        v_lshlrev_b32 v{t+6}, 2, v{t+1}
        s_and_b32 s{sT0}, s{sJ}, 1
        s_lshl_b32 s{sT1}, s{sT0}, 8
        s_add_u32 s{sT1}, s{sT1}, {L_G2}
        v_add_u32 v{t+6}, s{sT1}, v{t+6}
        ds_read_b32 v{t+8}, v{t+6}
        ds_read_b32 v{t+9}, v{t+6} offset:32
        v_lshlrev_b32 v{t+4}, 10, v{t+1}
        v_lshl_add_u32 v{t+4}, v{t+3}, 4, v{t+4}
        s_lshl_b32 s{sT1}, s{sRB}, 17
        s_lshl_b32 s{sT0}, s{sT0}, 16
        s_add_u32 s{sT1}, s{sT1}, s{sT0}
        s_add_u32 s{sT1}, s{sT1}, s{sU1}
        s_add_u32 s{sT2}, s{sT1}, 8192
        s_waitcnt lgkmcnt(0)
        s_barrier
        """)
        R = 32
        for u in range(2):
            for wv in range(4):
                for hf in range(2):
                    o += L(f"ds_read_b128 {vr(R + u*32 + wv*8 + hf*4, 4)}, v{t+2} offset:{wv*64*RS + u*8*RS + hf*16}")
        B = t + 12
        for q in range(4): o += L(f"v_accvgpr_read_b32 v{B+8+q}, a{232+q}")
        for q in range(4): o += L(f"v_lshlrev_b32 v{B+2*q}, 16, v{B+8+q}\nv_and_b32 v{B+2*q+1}, 0xffff0000, v{B+8+q}")
        for u in range(2):
            o += L(f"v_sub_f32 v{t+8+u}, 1.0, v{t+8+u}\nv_cvt_pk_bf16_f32 v{t+8+u}, v{t+8+u}, v{t+8+u}\nv_lshlrev_b32 v{t+8+u}, 16, v{t+8+u}")
        for u in range(2):
            b = R + u*32
            for q in range(8): o += L(f"v_add_f32 v{b+q}, v{b+q}, v{b+8+q}")
            for q in range(8): o += L(f"v_add_f32 v{b+16+q}, v{b+16+q}, v{b+24+q}")
            for q in range(8): o += L(f"v_fmac_f32 v{b+q}, v{t+8+u}, v{B+q}")
            for q in range(8): o += L(f"v_add_f32 v{b+q}, v{b+q}, v{b+16+q}")
            for q in range(4): o += L(f"v_cvt_pk_bf16_f32 v{b+8+q}, v{b+2*q}, v{b+2*q+1}")
            o += L(f"buffer_store_dwordx4 {vr(b+8, 4)}, v{t+4}, {srd(SRD_OUT)}, s{sT1+u} offen")
        return o

    def build(self):
        e = self.e
        self.prologue()
        self.mk_srd(SRD_KV if False else 92, 78, 1024)
        e(f"""
        v_and_b32 v{TMP+5}, 7, v0
        v_lshlrev_b32 v{TMP+5}, 4, v{TMP+5}
        s_lshr_b32 s{sT0}, s{sJ}, 1
        s_lshl_b32 s{sT0}, s{sT0}, 7
        buffer_load_dwordx4 a[232:235], v{TMP+5}, s[92:95], s{sT0} offen
        """)
        head = self.p
        self.p = []
        body_k = self.kv_phase(False); body_v = self.kv_phase(True)
        self.stamp()
        after = []
        after += self.p; self.p = []
        after += self.stats()
        after += L("s_barrier")
        after += self.dma_m(7)
        for c in range(8): after += self.dma_q(c)
        extra = {3: L("@waitvm kvst") + self.get_nonce_fast() + self.flag_store(0)}
        after += self.m_phase(extra)
        self.stamp(); after += self.p; self.p = []
        after += L(f"s_mul_i32 s{sU0}, s{sJ}, {6*4096}\ns_lshl_b32 s{sT0}, s{sW}, 10\ns_add_u32 s{sU0}, s{sU0}, s{sT0}")
        m, rest = weave(self.q_mfmas(), self.gelu())
        after += m + rest
        self.stamp(); after += self.p; self.p = []
        sc = hx(f2u(0.25 * 1.4426950408889634))
        qe = []
        for r in range(16): qe += L(f"v_mul_f32 v{ACC+48+r}, {sc}, v{ACC+48+r}")
        after += qe
        after += self.kv_fetch()
        after += self.flag_store(1)
        for r in range(8): after += L(f"v_cvt_pk_bf16_f32 v{96+r}, v{ACC+48+2*r}, v{ACC+48+2*r+1}")
        after += L("s_waitcnt lgkmcnt(0)\ns_barrier")
        after += self.final_setup()
        after += self.kv_to_lds()
        self.stamp(); after += self.p; self.p = []
        fill = [self.wf_dma(n) for n in range(NRING)]
        after += self.attention(fill)
        after += L("@waitvm ost") + self.flag_store(2)
        self.stamp(); after += self.p; self.p = []
        after += self.final()
        self.stamp(); after += self.p; self.p = []
        if self.stamps:
            after += L(f"s_lshl_b32 s{sT0}, s2, 2\ns_add_u32 s{sT0}, s{sT0}, s{sW}\ns_lshl_b32 s{sT0}, s{sT0}, 6\ns_add_u32 s{sT0}, s{sT0}, {WS_STAMP}\nv_mov_b32 v1, 0\ns_mov_b64 exec, 1")
            for q in range(4):
                after += L(f"buffer_store_dwordx4 a[{240+4*q}:{243+4*q}], v1, {srd(SRD_WS)}, s{sT0} offen offset:{16*q}")
        mark0, mark1 = I("@m0"), I("@m1")
        br = L(f"s_cmp_ge_u32 s{sJ}, 8\ns_cbranch_scc1 L_kv_v")
        full_k = finalize(head + br + [mark0] + body_k + [mark1] + L("L_kv_done:") + after)
        full_v = finalize(head + br + [mark0] + body_v + [mark1] + L("L_kv_done:") + after)
        i0, i1 = full_v.index(mark0), full_v.index(mark1)
        vpart = full_v[i0+1:i1]
        j1 = full_k.index(mark1)
        assert [x.text for x in full_k[j1:]] == [x.text for x in full_v[i1:]]
        prog = full_k + L("L_end:\ns_endpgm\nL_kv_v:") + vpart + L("s_branch L_kv_done")
        return prog
    def get_nonce_fast(self):
        return self.get_nonce()

def emit(prog, path):
    hdr = open("gated_mix__sliding_block__mixer_channel_mlp__prompt.s.ref").read().split("; Override launch")[0]
    txt = hdr + "; @launch grid=(256,1,1) block=(256,1,1) lds=163840\n"
    txt += f""".amdgcn_target "amdgcn-amd-amdhsa--gfx950"
.text
.globl {KNAME}
.p2align 8
.type {KNAME},@function
{KNAME}:
"""
    txt += render(prog)
    txt += f"""s_endpgm
.section .rodata,"a"
.p2align 6
.amdhsa_kernel {KNAME}
  .amdhsa_next_free_vgpr 512
  .amdhsa_next_free_sgpr 102
  .amdhsa_accum_offset 256
  .amdhsa_group_segment_fixed_size 0
  .amdhsa_kernarg_size 96
  .amdhsa_user_sgpr_count 2
  .amdhsa_user_sgpr_kernarg_segment_ptr 1
  .amdhsa_system_sgpr_workgroup_id_x 1
.end_amdhsa_kernel
"""
    open(path, "w").write(txt)

if __name__ == "__main__":
    out = sys.argv[1] if len(sys.argv) > 1 else "k.s"
    g = Gen(stamps=("--stamps" in sys.argv))
    prog = g.build()
    emit(prog, out)
    print("instructions:", sum(1 for i in prog if i.kind not in ('label', 'pseudo')))
```
